```python
import torch

def _softmax(x, axis=-1):
    return torch.softmax(x, dim=axis)
def _gelu(x):
    return torch.nn.functional.gelu(x, approximate="tanh")
def _silu(x):
    return torch.nn.functional.silu(x)
def _sigmoid(x):
    return torch.sigmoid(x)
def _layernorm(x, axis=-1, eps=1e-5):
    m = x.mean(dim=axis, keepdim=True)
    v = x.var(dim=axis, keepdim=True, unbiased=False)
    return (x - m) / torch.sqrt(v + eps)
def _scatter_add(tgt, idx, src, axis=0):
    return tgt.clone().index_add_(axis, idx, src)
def _segment_sum(src, seg, n):
    out = torch.zeros((n,) + src.shape[1:], dtype=src.dtype)
    return out.index_add_(0, seg, src)
def _pad(x, pw):
    flat = tuple(v for pair in reversed(pw) for v in pair)
    return torch.nn.functional.pad(x, flat)

kernel_name = 'parallel_sum__linear_attn_block__glu_gated_bilinear__prompt'

def setup_inputs():

    _w = (lambda a: (lambda t: t.to(torch.bfloat16) if t.is_floating_point() else t)(torch.as_tensor(a)))
    def _A_setup():
        B, S, D = 1, 2048, 640
        return {
            "x": _w((lambda *s: torch.randn(*s, dtype=torch.bfloat16) * 0.05)(B, S, D)),
            "wqkv": _w((lambda *s: torch.randn(*s, dtype=torch.bfloat16) * 0.05)(D, 3 * D)),
            "wo": _w((lambda *s: torch.randn(*s, dtype=torch.bfloat16) * 0.05)(D, D)),
        }
    _A_in = _A_setup()

    def _B_setup():
        B, S, D, F = 1, 2048, 640, 1536
        return {
            "x": _w((lambda *s: torch.randn(*s, dtype=torch.bfloat16) * 0.05)(B, S, D)),
            "w_gate": _w((lambda *s: torch.randn(*s, dtype=torch.bfloat16) * 0.2)(D, F) * (D ** -0.5)),
            "w_up": _w((lambda *s: torch.randn(*s, dtype=torch.bfloat16) * 0.2)(D, F) * (D ** -0.5)),
            "w_down": _w((lambda *s: torch.randn(*s, dtype=torch.bfloat16) * 0.2)(F, D) * (F ** -0.5)),
        }
    _B_in = _B_setup()

    return {
        "A_x": _A_in["x"],
        "A_wqkv": _A_in["wqkv"],
        "A_wo": _A_in["wo"],
        "B_x": _B_in["x"],
        "B_w_gate": _B_in["w_gate"],
        "B_w_up": _B_in["w_up"],
        "B_w_down": _B_in["w_down"],
    }

def reference(A_x, A_wqkv, A_wo, B_x, B_w_gate, B_w_up, B_w_down):
    def _A_ref(x, wqkv, wo):
        B, S, D = x.shape
        H = 32; Dh = D // H
        qkv = (lambda x, *d: x.permute(*d))((x @ wqkv).reshape(B, S, 3, H, Dh), 2, 0, 3, 1, 4)
        q, k, v = qkv[0], qkv[1], qkv[2]
        phi = lambda t: torch.where(t > 0, t + 1, torch.exp(t)) + 1e-6
        pq, pk = phi(q), phi(k)
        kv = torch.einsum("bhsd,bhse->bhde", pk, v)
        z = torch.einsum("bhsd->bhd", pk)
        num = torch.einsum("bhqd,bhde->bhqe", pq, kv)
        den = torch.einsum("bhqd,bhd->bhq", pq, z)[..., None] + 1e-6
        o = num / den
        return (lambda x, *d: x.permute(*d))(o, 0, 2, 1, 3).reshape(B, S, D) @ wo

    def _B_ref(x, w_gate, w_up, w_down):
        g = torch.einsum("bsd,df->bsf", x, w_gate)
        u = torch.einsum("bsd,df->bsf", x, w_up)
        h = g * u
        return torch.einsum("bsf,fd->bsd", h, w_down)

    x = A_x
    xn = _layernorm(x, axis=-1)
    return x + _A_ref(xn, A_wqkv, A_wo) + _B_ref(xn, B_w_gate, B_w_up, B_w_down)
```

```python
import copy
class Asm:
    def __init__(self):
        self.L = []
        self.vm = 0; self.vm_done = -1
        self.lg = 0; self.lg_done = -1
    def e(self, s):
        for line in s.split('\n'):
            self.L.append('    ' + line.strip())
    def label(self, s): self.L.append(s + ':')
    def raw(self, s): self.L.append(s)
    def vmem(self, s):
        self.e(s); self.vm += 1; return self.vm - 1
    def lds(self, s):
        self.e(s); self.lg += 1; return self.lg - 1
    def wait(self, vm=None, lg=None):
        parts = []
        if vm is not None and vm > self.vm_done:
            n = min(self.vm - 1 - vm, 63)
            parts.append(f'vmcnt({n})'); self.vm_done = self.vm - 1 - n
        if lg is not None and lg > self.lg_done:
            n = min(self.lg - 1 - lg, 15)
            parts.append(f'lgkmcnt({n})'); self.lg_done = self.lg - 1 - n
        if parts:
            self.e('s_waitcnt ' + ' '.join(parts)); return True
        return False
    def wait_all(self, vm=True, lg=True):
        return self.wait(self.vm - 1 if vm else None, self.lg - 1 if lg else None)
    def state(self): return (self.vm, self.vm_done, self.lg, self.lg_done)
    def set_state(self, st): self.vm, self.vm_done, self.lg, self.lg_done = st
    def text(self): return '\n'.join(self.L) + '\n'
def vr(b, n=1, p='v'): return f'{p}{b}' if n == 1 else f'{p}[{b}:{b+n-1}]'
def ar(b, n=1): return vr(b, n, 'a')
def sr(b, n=1): return vr(b, n, 's')
```

```python
import sys
sys.path.insert(0, 'gen')
from asmlib import *

NAME = 'parallel_sum__linear_attn_block__glu_gated_bilinear__prompt'
RT = 88 * 1024
ACT_OFF = 0
ACT_SZ = 128 * RT
B2_OFF = ACT_OFF + ACT_SZ
CT = 68 * 1024
B2_SZ = 40 * CT
KV_OFF = B2_OFF + B2_SZ
KV_SZ = 32 * 4096
BIG = 0x7ff00000

class Opt:
    ld_x = ''
    ld_w = ''
    ld_w2 = ''
    st_act = ''
    st_b2 = ''
    k2_lda = ''
    k2_ldb = ''
    st_out = ''
    prefetch_code = True
    k2_depth = 6
    stamps = False

def srd(k, s, lo, hi, nrec):
    k.e(f's_mov_b32 s{s}, {lo}')
    k.e(f's_and_b32 s{s+1}, {hi}, 0xffff')
    k.e(f's_mov_b32 s{s+2}, {nrec}')
    k.e(f's_mov_b32 s{s+3}, 0x20000')

def add64(k, dlo, dhi, slo, shi, off):
    k.e(f's_add_u32 {dlo}, {slo}, {off}')
    k.e(f's_addc_u32 {dhi}, {shi}, 0')

def gen_k1(o):
    k = Asm()
    SX, S0, S1, S2, S3, S4, SACT, SR, SB2, SKV, SDBG = 28, 32, 36, 40, 44, 48, 52, 56, 60, 92, 24
    SW = [S0, S1, S2, S3, S4]
    TA, TB = 64, 74
    sREG, sHOFF, sQOFF, sMASK, sONES, sC, sL2E = 84, 85, 86, 87, 88, 89, 90
    sT = 91
    X = 96; ACC2 = 32
    vLANE, vST = 0, 1
    vW = 2
    vTR = 8
    vRSTD, vNB = 14, 15
    vT = 16
    vO = [24, 28]
    ACC1 = 0; WF = 96; RL = 168
    PHYS = [0, 1, 5, 2, 3, 4]
    vXO = 32
    vXR = 36
    vS = 40
    vP = 44

    k.label('k1_kernel')
    k.e('s_cmp_ge_u32 s2, 256\ns_cbranch_scc1 K1_done')
    k.e('s_load_dwordx16 s[8:23], s[0:1], 0\ns_load_dwordx4 s[24:27], s[0:1], 64')
    k.e(f'v_lshrrev_b32 v{vP}, 6, v0\nv_and_b32 v0, 63, v0')
    k.e(f'v_readfirstlane_b32 s3, v{vP}')
    if o.prefetch_code:
        k.e('s_getpc_b64 s[100:101]')
        k.e('s_lshr_b32 s4, s2, 3\ns_lshl_b32 s4, s4, 11')
        k.e(f'v_and_b32 v{vP}, 15, v0\nv_lshlrev_b32 v{vP}, 7, v{vP}\nv_add_u32 v{vP}, s4, v{vP}')
        k.e(f'v_min_u32 v{vP}, CODE_BYTES, v{vP}')
        k.vmem(f'global_load_dword v{vP+1}, v{vP}, s[100:101]')
    k.e('s_and_b32 s4, s2, 3\ns_lshl_b32 s4, s4, 2\ns_lshr_b32 s5, s2, 3\ns_and_b32 s6, s5, 3\ns_add_u32 s4, s4, s6')
    k.e('s_lshr_b32 s5, s5, 2\ns_and_b32 s6, s2, 4\ns_lshl_b32 s6, s6, 1\ns_add_u32 s5, s5, s6')
    k.e(f's_mul_i32 s{sREG}, s3, 40960')
    k.e(f's_mov_b32 s{sMASK}, 0xffff0000\ns_mov_b32 s{sONES}, 0x3f803f80\ns_mov_b32 s{sC}, 0x358637bd\ns_mov_b32 s{sL2E}, 0x3fb8aa3b')
    k.e(f'v_lshrrev_b32 v{vP}, 3, v0\nv_and_b32 v{vP+2}, 7, v0')
    k.e(f'v_lshrrev_b32 v{vP+3}, 1, v{vP}\nv_xor_b32 v{vP+3}, v{vP+3}, v{vP+2}\nv_lshlrev_b32 v{vP+3}, 4, v{vP+3}')
    k.e(f'v_mul_u32_u24 v{vP+4}, 1280, v{vP}')
    k.e(f'v_add_u32 v{vXO}, v{vP+3}, v{vP+4}')
    k.e(f'v_xor_b32 v{vXO+1}, 64, v{vXO}\nv_add_u32 v{vXO+1}, 9216, v{vXO+1}')
    k.e(f'v_add_u32 v{vXO+2}, {2*9216}, v{vXO}\nv_add_u32 v{vXO+3}, {2*9216}, v{vXO+1}')
    k.e('s_waitcnt lgkmcnt(0)')
    k.e('s_lshl_b32 s6, s4, 2\ns_add_u32 s6, s6, s3\ns_mul_i32 s7, s6, 40960')
    add64(k, 's8', 's9', 's8', 's9', 's7')
    srd(k, SX, 's8', 's9', 40960)
    add64(k, 's100', 's101', 's26', 's27', KV_OFF)
    srd(k, SKV, 's100', 's101', KV_SZ)
    k.e('s_cmp_lt_u32 s5, 12\ns_cbranch_scc1 K1_nozero\ns_cmp_lg_u32 s4, 0\ns_cbranch_scc1 K1_nozero')
    k.e(f's_sub_u32 s7, s5, 12\ns_lshl_b32 s7, s7, 2\ns_add_u32 s7, s7, s3\ns_lshl_b32 s7, s7, 13')
    k.e(f'v_lshlrev_b32 v{vP+5}, 4, v0')
    for i in range(4): k.e(f'v_mov_b32 v{vP+8+i}, 0')
    for i in range(4): k.e(f'buffer_store_dwordx4 v[{vP+8}:{vP+11}], v{vP+5}, s[{SKV}:{SKV+3}], s7 offen offset:{i*1024} sc1')
    k.e('s_add_u32 s7, s7, 4096')
    for i in range(4): k.e(f'buffer_store_dwordx4 v[{vP+8}:{vP+11}], v{vP+5}, s[{SKV}:{SKV+3}], s7 offen offset:{i*1024} sc1')
    k.label('K1_nozero')

    xid = {}
    def issue_x(j):
        k.e(f's_add_u32 m0, s{sREG}, {12288 + (j % 6) * 4096}')
        k.e(f's_movk_i32 s7, {j*128}')
        for i in range(4):
            xid[j] = k.vmem(f'buffer_load_dwordx4 v{vXO+i}, s[{SX}:{SX+3}], s7 offen offset:{i*1024} {o.ld_x} lds')
    for j in range(6): issue_x(j)

    k.e('s_cmp_ge_u32 s5, 12\ns_cselect_b32 s6, 1, 0')
    for p in (10, 16, 18):
        k.e(f's_sub_u32 s{p}, s{p}, 4096\ns_subb_u32 s{p+1}, s{p+1}, 0')
    k.e('s_cmp_ge_u32 s5, 12\ns_cbranch_scc1 K1_kvsetup')
    k.e('s_cmp_lt_u32 s5, 10\ns_cselect_b32 s98, s5, 0\ns_lshl_b32 s98, s98, 7')
    k.e('s_lshl_b32 s99, s5, 8')
    add64(k, f's{S0}', f's{S0+1}', 's10', 's11', 's98'); k.e(f's_sub_u32 s{S0+2}, {640*3840+4096}, s98')
    add64(k, f's{S1}', f's{S1+1}', 's16', 's17', 's99'); k.e(f's_sub_u32 s{S1+2}, {640*3072+4096}, s99')
    add64(k, f's{S2}', f's{S2+1}', 's18', 's19', 's99'); k.e(f's_mov_b32 s{S2+2}, s{S1+2}')
    add64(k, f's{S3}', f's{S3+1}', f's{S1}', f's{S1+1}', 128 + 2048); k.e(f's_sub_u32 s{S3+2}, s{S1+2}, {128+2048}')
    add64(k, f's{S4}', f's{S4+1}', f's{S2}', f's{S2+1}', 128); k.e(f's_sub_u32 s{S4+2}, s{S1+2}, 128')
    k.e(f's_movk_i32 s{sT}, 3072')
    k.e(f's_lshl_b32 s{sHOFF}, s5, 12')
    k.e(f's_lshl_b32 s{sQOFF}, s5, 11\ns_add_u32 s{sQOFF}, s{sQOFF}, {68*1024}\ns_cmp_lt_u32 s5, 10\ns_cselect_b32 s{sQOFF}, s{sQOFF}, {BIG}')
    k.e('s_movk_i32 s100, 64')
    k.e('s_branch K1_setup2')
    k.label('K1_kvsetup')
    k.e('s_sub_u32 s7, s5, 12\ns_mul_i32 s98, s7, 320\ns_add_u32 s98, s98, 1280')
    k.e('s_and_b32 s7, s7, 1\ns_lshl_b32 s99, s7, 6\ns_add_u32 s99, s99, s98')
    k.e('s_xor_b32 s7, s7, 1\ns_lshl_b32 s7, s7, 8\ns_add_u32 s98, s98, s7')
    add64(k, f's{S0}', f's{S0+1}', 's10', 's11', 's99'); k.e(f's_sub_u32 s{S0+2}, {640*3840+4096}, s99')
    add64(k, f's{S1}', f's{S1+1}', f's{S0}', f's{S0+1}', 128); k.e(f's_sub_u32 s{S1+2}, s{S0+2}, 128')
    add64(k, f's{S2}', f's{S2+1}', 's10', 's11', 's98'); k.e(f's_sub_u32 s{S2+2}, {640*3840+4096}, s98')
    add64(k, f's{S3}', f's{S3+1}', f's{S0}', f's{S0+1}', 1280 + 2048); k.e(f's_sub_u32 s{S3+2}, s{S0+2}, {1280+2048}')
    add64(k, f's{S4}', f's{S4+1}', f's{S0}', f's{S0+1}', 1280 + 128); k.e(f's_sub_u32 s{S4+2}, s{S0+2}, {1280+128}')
    k.e(f's_movk_i32 s{sT}, 3840')
    k.e(f's_mov_b32 s{sHOFF}, 0\ns_mov_b32 s{sQOFF}, 0')
    k.e('s_movk_i32 s100, 1280')
    k.label('K1_setup2')
    for s in SW:
        k.e(f's_and_b32 s{s+1}, s{s+1}, 0xffff\ns_mov_b32 s{s+3}, 0x20000')
    for g in range(10):
        k.e(f's_mov_b32 s{TA+g}, {g*64*3840}')
        k.e(f's_mul_i32 s{TB+g}, s{sT}, {g*64}')
    k.e(f's_lshl_b32 s7, s3, 4\nv_add_u32 v{vP+4}, s7, v{vP}')
    k.e(f'v_lshlrev_b32 v{vP+5}, 1, v{vP}\nv_and_b32 v{vP+5}, 4, v{vP+5}\nv_xor_b32 v{vP+5}, v{vP+5}, v{vP+2}')
    k.e(f'v_lshlrev_b32 v{vP+6}, 4, v{vP+5}')
    k.e(f'v_and_b32 v{vP+7}, 48, v{vP+6}\nv_lshrrev_b32 v{vP+5}, 2, v{vP+5}\nv_mul_lo_u32 v{vP+5}, v{vP+5}, s100\nv_add_u32 v{vP+7}, v{vP+7}, v{vP+5}')
    k.e(f'v_mul_u32_u24 v{vP+8}, 3840, v{vP+4}\nv_mul_lo_u32 v{vP+9}, v{vP+4}, s{sT}')
    k.e(f's_lshl_b32 s7, s{sT}, 3\ns_sub_u32 s7, s7, 1024')
    k.e(f'v_add_u32 v{vW}, v{vP+8}, v{vP+6}\nv_add_u32 v{vW}, 4096, v{vW}\nv_add_u32 v{vW+1}, {8*3840-1024}, v{vW}')
    k.e(f'v_add_u32 v{vW+2}, v{vP+9}, v{vP+6}\nv_add_u32 v{vW+2}, 2048, v{vW+2}\nv_add_u32 v{vW+3}, s7, v{vW+2}')
    k.e(f'v_add_u32 v{vW+4}, v{vP+9}, v{vP+7}\nv_add_u32 v{vW+4}, 4096, v{vW+4}\nv_add_u32 v{vW+5}, s7, v{vW+4}')
    k.e(f'v_lshrrev_b32 v{vP+4}, 5, v0\nv_lshlrev_b32 v{vP+4}, 10, v{vP+4}')
    k.e(f'v_bfe_u32 v{vP+5}, v0, 2, 2\nv_lshlrev_b32 v{vP+6}, 7, v{vP+5}\nv_add_u32 v{vP+4}, v{vP+4}, v{vP+6}')
    k.e(f'v_lshrrev_b32 v{vP+5}, 1, v{vP+5}\nv_lshlrev_b32 v{vP+5}, 6, v{vP+5}\nv_add_u32 v{vP+4}, v{vP+4}, v{vP+5}')
    k.e(f'v_and_b32 v{vP+5}, 16, v0\nv_lshlrev_b32 v{vP+5}, 1, v{vP+5}\nv_add_u32 v{vP+4}, v{vP+4}, v{vP+5}')
    k.e(f'v_and_b32 v{vP+5}, 3, v0\nv_lshlrev_b32 v{vP+5}, 3, v{vP+5}\nv_add_u32 v{vTR}, v{vP+4}, v{vP+5}')
    k.e(f'v_xor_b32 v{vTR+3}, 64, v{vTR}')
    for h in range(2):
        for b in (1, 2): k.e(f'v_add_u32 v{vTR+3*h+b}, {b*65536}, v{vTR+3*h}')
    k.e(f'v_and_b32 v{vP+4}, 31, v0\nv_bfe_u32 v{vP+5}, v0, 1, 3\nv_lshrrev_b32 v{vP+6}, 5, v0\nv_xor_b32 v{vP+5}, v{vP+5}, v{vP+6}')
    k.e(f'v_lshlrev_b32 v{vP+5}, 4, v{vP+5}\nv_lshlrev_b32 v{vP+4}, 7, v{vP+4}\nv_add_u32 v{vP+4}, v{vP+4}, v{vP+5}')
    k.e(f's_add_u32 s7, s{sREG}, 12288')
    for i in range(4):
        k.e(f'v_xor_b32 v{vXR+i}, {32*i}, v{vP+4}\nv_add_u32 v{vXR+i}, s7, v{vXR+i}')
    k.e(f'v_bfe_u32 v{vP+4}, v0, 4, 1\nv_mul_u32_u24 v{vP+4}, {RT}, v{vP+4}\nv_lshlrev_b32 v{vP+5}, 8, v{vP+6}\nv_add_u32 v{vP+4}, v{vP+4}, v{vP+5}')
    k.e(f'v_and_b32 v{vP+5}, 15, v0\nv_lshlrev_b32 v{vP+5}, 4, v{vP+5}\nv_add_u32 v{vST}, v{vP+4}, v{vP+5}')
    k.e('s_lshl_b32 s7, s4, 2\ns_add_u32 s7, s7, s3')
    k.e(f's_mul_i32 s7, s7, {2*RT}')
    add64(k, 's100', 's101', 's26', 's27', 's7')
    srd(k, SACT, 's100', 's101', 2 * RT)
    k.e('s_lshl_b32 s7, s2, 2\ns_add_u32 s7, s7, s3\ns_mul_i32 s98, s7, 6554\ns_lshr_b32 s98, s98, 16')
    k.e('s_mul_i32 s99, s98, 10\ns_sub_u32 s99, s7, s99')
    k.e('s_cmp_lt_u32 s98, 48\ns_cselect_b32 s100, s20, s12\ns_cselect_b32 s101, s21, s13\ns_cselect_b32 s14, 0, 48')
    k.e('s_sub_u32 s14, s98, s14\ns_mul_i32 s14, s14, 40960\ns_lshl_b32 s15, s99, 7\ns_add_u32 s14, s14, s15')
    k.e('s_cmp_lt_u32 s7, 680\ns_cselect_b32 s14, s14, 0\ns_cselect_b32 s15, 39808, 0')
    add64(k, 's100', 's101', 's100', 's101', 's14')
    srd(k, SR, 's100', 's101', 's15')
    k.e(f's_mul_i32 s14, s99, {4*CT}\ns_lshl_b32 s98, s98, 10\ns_add_u32 s14, s14, s98\ns_add_u32 s14, s14, {B2_OFF}')
    k.e(f's_cmp_lt_u32 s7, 680\ns_cselect_b32 s14, s14, 0\ns_cselect_b32 s15, {3*CT+1024}, 0')
    add64(k, 's100', 's101', 's26', 's27', 's14')
    srd(k, SB2, 's100', 's101', 's15')
    srd(k, SDBG, 's24', 's25', 256)
    k.e(f's_cmp_eq_u32 s6, 1\ns_cselect_b32 s7, s{sC}, 0')
    k.e(f'v_mov_b32 v{vP+4}, s{sC}\nv_mov_b32 v{vP+5}, s7')
    for r in range(96):
        src = f'v{vP+4}' if r < 32 else (f'v{vP+5}' if r < 80 else '0')
        k.e(f'v_accvgpr_write_b32 a{ACC1+r}, {src}')
    for i in range(4): k.e(f'v_mov_b32 v{vS+i}, 0')
    k.e(f'v_mul_u32_u24 v{vP+10}, 1280, v{vP}\nv_lshlrev_b32 v{vP+11}, 4, v{vP+2}\nv_add_u32 v{vP+10}, v{vP+10}, v{vP+11}')
    for i in range(1, 4): k.e(f'v_add_u32 v{vP+10+i}, {i*9216}, v{vP+10}')

    wid = {}
    def w_ops(g):
        st = g % 10
        base = PHYS[g % 6] * 6144
        ops = []
        def m0(off): return lambda: k.e(f's_add_u32 m0, s{sREG}, {off}')
        def ld(vo, s, so, imm):
            def f(): wid[g] = k.vmem(f'buffer_load_dwordx4 v{vo}, s[{s}:{s+3}], s{so} offen offset:{imm} {o.ld_w} lds')
            return f
        if g < 10:
            ops += [m0(base), None, ld(vW, S0, TA+st, 0), ld(vW+1, S0, TA+st, 1024), ld(vW+2, S1, TB+st, 2048), ld(vW+3, S1, TB+st, 3072),
                    m0(base + 4096), None, ld(vW+4, S2, TB+st, 0), ld(vW+5, S2, TB+st, 1024)]
        else:
            ops += [m0(base), None, ld(vW+2, S3, TB+st, 0), ld(vW+3, S3, TB+st, 1024), ld(vW+2, S4, TB+st, 2048), ld(vW+3, S4, TB+st, 3072)]
        return ops
    def run_ops(ops):
        for f in ops:
            if f is None: k.e('s_nop 0')
            else: f()

    def stats(j):
        for f in range(4):
            for d in range(4):
                r = X + (4*j + f)*4 + d
                k.e(f'v_dot2c_f32_bf16 v{vS + (d & 1)}, s{sONES}, v{r}')
                k.e(f'v_dot2c_f32_bf16 v{vS + 2 + (d & 1)}, v{r}, v{r}')
    rlid = None
    for j in range(10):
        k.wait(vm=xid[j])
        for f in range(4):
            rid = k.lds(f'ds_read_b128 v[{X+(4*j+f)*4}:{X+(4*j+f)*4+3}], v{vXR+f} offset:{(j % 6)*4096}')
        if j > 0: stats(j - 1)
        k.wait(lg=rid)
        if j + 6 < 10: issue_x(j + 6)
        if j == 3: run_ops(w_ops(0)); run_ops(w_ops(1))
        if j == 5: run_ops(w_ops(2))
        if j == 7: run_ops(w_ops(3))
        if j == 8: run_ops(w_ops(4))
        if j == 9:
            run_ops(w_ops(5))
            k.e(f's_add_u32 m0, s{sREG}, 36864\ns_nop 0')
            for i in range(4):
                rlid = k.vmem(f'buffer_load_dwordx4 v{vP+10+i}, s[{SR}:{SR+3}], 0 offen offset:{i*1024} {o.ld_w2} lds')
    stats(9)

    frid = {}
    def tr_ops(n):
        p, ks = divmod(n, 40)
        g = n // 4; kq = n % 4
        nt = 6 if p == 0 else 4
        ops = []
        for t in range(nt):
            for hf in range(2):
                off = kq*40960 + PHYS[g % 6]*6144 + (t >> 1)*2048 + hf*512
                b, imm = divmod(off, 65536)
                assert imm + 2048 <= 65536 or True
                dst = WF + (n % 3)*24 + t*4 + hf*2
                def f(dst=dst, t=t, b=b, imm=imm): frid[n] = k.lds(f'ds_read_b64_tr_b16 a[{dst}:{dst+1}], v{vTR + 3*(t & 1) + b} offset:{imm}')
                ops.append(f)
        return ops
    k.wait(vm=wid[0])
    k.e('s_barrier')
    run_ops(tr_ops(0)); run_ops(tr_ops(1))
    k.e(f's_sub_u32 s7, s5, 12\ns_lshl_b32 s7, s7, 2\ns_or_b32 s98, s4, s3\ns_cmp_eq_u32 s98, 0\ns_cselect_b32 s7, s7, {BIG}\ns_cmp_eq_u32 s6, 1\ns_cselect_b32 s7, s7, {BIG}')
    k.e(f'v_mov_b32 v{vP+4}, s7\nv_mov_b32 v{vP+5}, 1')
    k.vmem(f'buffer_store_dword v{vP+5}, v{vP+4}, s[{SDBG}:{SDBG+3}], 0 offen sc1')
    k.e(f'v_add_f32 v{vS}, v{vS}, v{vS+1}\nv_add_f32 v{vS+2}, v{vS+2}, v{vS+3}')
    k.e(f'v_mov_b32 v{vS+1}, v{vS}\nv_mov_b32 v{vS+3}, v{vS+2}\ns_nop 1')
    k.e(f'v_permlane32_swap_b32 v{vS}, v{vS+1}\nv_permlane32_swap_b32 v{vS+2}, v{vS+3}\ns_nop 1')
    k.e(f'v_add_f32 v{vS}, v{vS}, v{vS+1}\nv_add_f32 v{vS+2}, v{vS+2}, v{vS+3}')
    k.e(f'v_mul_f32 v{vS}, 0x3acccccd, v{vS}\nv_mul_f32 v{vS+2}, 0x3acccccd, v{vS+2}')
    k.e(f'v_fma_f32 v{vS+2}, -v{vS}, v{vS}, v{vS+2}\nv_max_f32 v{vS+2}, 0, v{vS+2}\nv_add_f32 v{vS+2}, 0x3727c5ac, v{vS+2}')
    k.e(f'v_rsq_f32 v{vRSTD}, v{vS+2}\ns_nop 0\nv_mul_f32 v{vNB}, v{vS}, v{vRSTD}\nv_sub_f32 v{vNB}, 0, v{vNB}')

    def norm_ops(ks):
        b = X + 4*ks
        ops = []
        E = lambda s: (lambda: k.e(s))
        for d in range(4):
            ops.append(E(f'v_lshlrev_b32 v{vT+2*d}, 16, v{b+d}'))
            ops.append(E(f'v_and_b32 v{vT+2*d+1}, s{sMASK}, v{b+d}'))
        for i in range(8): ops.append(E(f'v_fma_f32 v{vT+i}, v{vT+i}, v{vRSTD}, v{vNB}'))
        for d in range(4): ops.append(E(f'v_cvt_pk_bf16_f32 v{b+d}, v{vT+2*d}, v{vT+2*d+1}'))
        return ops
    run_ops(norm_ops(0))
    k.e('s_nop 0')

    dmaq = []
    def kstep(n, valu, budget):
        p, ks = divmod(n, 40)
        nt = 6 if p == 0 else 4
        k.wait(lg=frid[n])
        trs = tr_ops(n + 2) if n + 2 < 80 else []
        per_tr = -(-len(trs) // nt)
        for t in range(nt):
            a = WF + (n % 3)*24 + t*4
            if p == 0:
                acc = f'a[{ACC1+16*t}:{ACC1+16*t+15}]'; c = acc
            else:
                acc = f'v[{ACC2+16*t}:{ACC2+16*t+15}]'; c = acc if ks > 0 else '0'
            k.e(f'v_mfma_f32_32x32x16_bf16 {acc}, a[{a}:{a+3}], v[{X+4*ks}:{X+4*ks+3}], {c}')
            used = 0
            if t == 0 and (n + 2) % 4 == 0 and (n + 2)//4 < 20:
                g = (n + 2)//4
                if k.wait(vm=wid[g]): used += 1
                k.e('s_barrier'); used += 1
                if g >= 2 and g + 4 < 20: dmaq.extend([f for f in w_ops(g + 4) if f is not None])
            for _ in range(per_tr):
                if trs: trs.pop(0)(); used += 1
            if dmaq and used < 6 and t != nt - 1:
                dmaq.pop(0)(); used += 1
            nv = budget(t, used)
            for _ in range(nv):
                if valu:
                    f = valu.pop(0)
                    f()
    for n in range(40):
        valu = norm_ops(n + 1) if n + 1 < 40 else []
        kstep(n, valu, lambda t, used: 4 if t < 5 else 0)
        assert not valu
    st = k.state(); dq_save = list(dmaq); wid_save = dict(wid); frid_save = dict(frid)
    k.e('s_cmp_eq_u32 s6, 1\ns_cbranch_scc1 K1_kv')

    E = lambda s: (lambda: k.e(s))
    def relayout_ops():
        ops = []
        t0, t1 = vT, vT + 1
        ops += [E(f'v_lshrrev_b32 v{t0}, 5, v0'), E(f'v_lshlrev_b32 v{t0}, 11, v{t0}'), E(f'v_and_b32 v{t1}, 28, v0'), E(f'v_lshlrev_b32 v{t1}, 5, v{t1}'),
                E(f'v_add_u32 v{t0}, v{t0}, v{t1}'), E(f'v_and_b32 v{t1}, 3, v0'), E(f'v_lshlrev_b32 v{t1}, 3, v{t1}'), E(f'v_add_u32 v{t0}, v{t0}, v{t1}'),
                E(f'v_add_u32 v{t0}, s{sREG}, v{t0}'), E(f'v_lshlrev_b32 v{t1}, 4, v0')]
        ids = {}
        ops.append(lambda: k.wait(vm=rlid))
        for n in range(4):
            for hf in range(2):
                def f(n=n, hf=hf): ids['r'] = k.lds(f'ds_read_b64_tr_b16 a[{RL+4*n+2*hf}:{RL+4*n+2*hf+1}], v{t0} offset:{36864 + n*32 + hf*1024}')
                ops.append(f)
        ops.append(lambda: k.wait(lg=ids['r']))
        for n in range(4):
            ops.append(E(f's_mov_b32 s7, {n*CT}'))
            ops.append(lambda n=n: k.vmem(f'buffer_store_dwordx4 a[{RL+4*n}:{RL+4*n+3}], v{t1}, s[{SB2}:{SB2+3}], s7 offen {o.st_b2}'))
        return ops
    def phi4(src, dst):
        ops = []
        for i in range(4): ops.append(E(f'v_accvgpr_read_b32 v{vT+i}, a{src+i}'))
        for i in range(4): ops.append(E(f'v_mul_f32 v{vT+4+i}, s{sL2E}, v{vT+i}'))
        for i in range(4):
            ops.append(E(f'v_exp_f32_e64 v{vT+4+i}, v{vT+4+i} clamp'))
            ops.append(E(f'v_max_f32 v{vT+i}, s{sC}, v{vT+i}'))
        for i in range(4): ops.append(E(f'v_add_f32 v{vT+i}, v{vT+i}, v{vT+4+i}'))
        for i in range(2): ops.append(E(f'v_cvt_pk_bf16_f32 v{dst+i}, v{vT+2*i}, v{vT+2*i+1}'))
        return ops
    def budget2(t, used): return max(0, 6 - used)

    valu = [E('s_nop 0')]*8 + relayout_ops()
    oi = 0
    for pair, kk in (((2, 4), 0), ((3, 5), 1)):
        for i in range(2):
            ob = vO[oi % 2]; oi += 1
            for hq in range(2):
                r0 = 8*i + 4*hq
                for j in range(4): valu.append(E(f'v_accvgpr_read_b32 v{vT+j}, a{ACC1+16*pair[0]+r0+j}'))
                for j in range(4): valu.append(E(f'v_accvgpr_read_b32 v{vT+4+j}, a{ACC1+16*pair[1]+r0+j}'))
                for j in range(4): valu.append(E(f'v_mul_f32 v{vT+j}, v{vT+j}, v{vT+4+j}'))
                for j in range(2): valu.append(E(f'v_cvt_pk_bf16_f32 v{ob+2*hq+j}, v{vT+2*j}, v{vT+2*j+1}'))
            valu.append(lambda ob=ob, kk=kk, i=i: k.vmem(f'buffer_store_dwordx4 v[{ob}:{ob+3}], v{vST}, s[{SACT}:{SACT+3}], s{sHOFF} offen offset:{kk*1024+i*512} {o.st_act}'))
    for t in range(2):
        for i in range(2):
            ob = vO[oi % 2]; oi += 1
            for hq in range(2): valu += phi4(ACC1 + 16*t + 8*i + 4*hq, ob + 2*hq)
            valu.append(lambda ob=ob, t=t, i=i: k.vmem(f'buffer_store_dwordx4 v[{ob}:{ob+3}], v{vST}, s[{SACT}:{SACT+3}], s{sQOFF} offen offset:{t*1024+i*512} {o.st_act}'))
    for n in range(40, 80): kstep(n, valu, budget2)
    run_ops(valu)
    k.e('s_nop 11')
    for tt in range(2):
        g, u = ACC2 + 16*tt, ACC2 + 32 + 16*tt
        for i in range(2):
            for j in range(0, 8, 2): k.e(f'v_pk_mul_f32 v[{g+8*i+j}:{g+8*i+j+1}], v[{g+8*i+j}:{g+8*i+j+1}], v[{u+8*i+j}:{u+8*i+j+1}]')
            ob = X + 8*tt + 4*i
            for j in range(4): k.e(f'v_cvt_pk_bf16_f32 v{ob+j}, v{g+8*i+2*j}, v{g+8*i+2*j+1}')
            k.vmem(f'buffer_store_dwordx4 v[{ob}:{ob+3}], v{vST}, s[{SACT}:{SACT+3}], s{sHOFF} offen offset:{(2+tt)*1024+i*512} {o.st_act}')
    k.e('s_endpgm')

    k.label('K1_kv')
    k.set_state(st); dmaq[:] = dq_save; wid.clear(); wid.update(wid_save); frid.clear(); frid.update(frid_save)
    ids = {}
    valu = [E('s_nop 0')]*8 + relayout_ops()
    valu += [E(f's_sub_u32 s7, s5, 12'), E('s_lshl_b32 s7, s7, 2'), E(f'v_mov_b32 v{vO[0]}, s7')]
    def fl(): ids['flag'] = k.vmem(f'buffer_load_dword v{vO[0]+1}, v{vO[0]}, s[{SDBG}:{SDBG+3}], 0 offen sc1')
    valu.append(fl)
    for q in range(10):
        for hq in range(2): valu += phi4(ACC1 + 8*q + 4*hq, X + 4*q + 2*hq)
    for q in range(10, 12):
        for hq in range(2):
            for j in range(4): valu.append(E(f'v_accvgpr_read_b32 v{vT+j}, a{ACC1+8*q+4*hq+j}'))
            for j in range(2): valu.append(E(f'v_cvt_pk_bf16_f32 v{X+4*q+2*hq+j}, v{vT+2*j}, v{vT+2*j+1}'))
    for n in range(40, 80): kstep(n, valu, budget2)
    run_ops(valu)
    EP = 336; EV = 128*EP
    a0, a1, a2 = vT, vT+1, vT+2
    k.e(f'v_and_b32 v{a0}, 31, v0\ns_lshl_b32 s7, s3, 5\nv_add_u32 v{a0}, s7, v{a0}\nv_mul_u32_u24 v{a0}, {EP}, v{a0}')
    k.e(f'v_lshrrev_b32 v{a1}, 5, v0\nv_lshlrev_b32 v{a2}, 3, v{a1}\nv_add_u32 v{a2}, v{a2}, v{a0}')
    k.e(f'v_lshlrev_b32 v{a1}, 4, v{a1}\nv_add_u32 v{a0}, v{a0}, v{a1}')
    k.e(f's_and_b32 s7, s5, 1\ns_lshl_b32 s98, s7, 6\ns_xor_b32 s7, s7, 1\ns_lshl_b32 s7, s7, 8')
    k.e(f'v_add_u32 v{a1}, s7, v{a0}\nv_add_u32 v{a0}, s98, v{a0}')
    k.e(f'v_mov_b32 v{vT+4}, s{sONES}\nv_mov_b32 v{vT+5}, s{sONES}')
    for t in range(4):
        for j in range(8): k.e(f'v_cvt_pk_bf16_f32 v{X+48+8*t+j}, v{ACC2+16*t+2*j}, v{ACC2+16*t+2*j+1}')
    k.wait_all(vm=False)
    k.e('s_barrier')
    for q in range(8): k.lds(f'ds_write_b128 v{a0}, v[{X+4*q}:{X+4*q+3}] offset:{(q >> 1)*64 + (q & 1)*32}')
    for q in range(8, 10): k.lds(f'ds_write_b128 v{a1}, v[{X+4*q}:{X+4*q+3}] offset:{(q & 1)*32}')
    for q in range(10, 12): k.lds(f'ds_write_b128 v{a1}, v[{X+4*q}:{X+4*q+3}] offset:{EV + (q & 1)*32}')
    for q in range(8): k.lds(f'ds_write_b128 v{a0}, v[{X+48+4*q}:{X+48+4*q+3}] offset:{EV + (q >> 1)*64 + (q & 1)*32}')
    k.lds(f'ds_write_b64 v{a2}, v[{vT+4}:{vT+5}] offset:{EV + 320}')
    b = ACC2
    k.e(f'v_lshrrev_b32 v{b}, 5, v0\nv_lshlrev_b32 v{b}, 3, v{b}\nv_bfe_u32 v{b+1}, v0, 2, 2\nv_add_u32 v{b}, v{b}, v{b+1}\nv_mul_u32_u24 v{b}, {EP}, v{b}')
    k.e(f'v_bfe_u32 v{b+1}, v0, 4, 1\nv_lshlrev_b32 v{b+1}, 2, v{b+1}\nv_and_b32 v{b+2}, 3, v0\nv_add_u32 v{b+1}, v{b+1}, v{b+2}')
    k.e(f'v_cmp_eq_u32 vcc, 5, v{b+1}')
    k.e(f'v_mov_b32 v{b+3}, 320')
    for hh in range(2):
        G = b + 4; y = b + 5; z = b + 6
        k.e(f's_mul_i32 s7, s3, 10\ns_add_u32 s7, s7, {5*hh}\nv_add_u32 v{G}, s7, v{b+1}\nv_min_u32 v{G}, 39, v{G}')
        k.e(f'v_lshrrev_b32 v{y}, 2, v{G}\nv_lshlrev_b32 v{y}, 5, v{y}')
        k.e(f'v_and_b32 v{z}, 1, v{G}\nv_lshlrev_b32 v{z}, 4, v{z}\nv_add_u32 v{y}, v{y}, v{z}')
        k.e(f'v_and_b32 v{z}, 2, v{G}\nv_lshlrev_b32 v{z}, 2, v{z}\nv_add_u32 v{y}, v{y}, v{z}')
        k.e(f'v_add_u32 v{b+8+2*hh}, v{y}, v{b}')
        k.e(f'v_cndmask_b32 v{y}, v{y}, v{b+3}, vcc\nv_add_u32 v{y}, {EV}, v{y}\nv_add_u32 v{b+9+2*hh}, v{y}, v{b}')
    k.e(f'v_and_b32 v{b+12}, 31, v0\nv_lshlrev_b32 v{b+12}, 2, v{b+12}\nv_lshrrev_b32 v{b+13}, 5, v0\nv_lshlrev_b32 v{b+13}, 9, v{b+13}\nv_add_u32 v{b+12}, v{b+12}, v{b+13}')
    k.wait_all(vm=False)
    k.e('s_barrier')
    FR = 32
    rid = {}
    def rd(hh, kk):
        base = FR + (hh*8 + kk)*8
        for m in range(2):
            for hf in range(2):
                rid[hh, kk] = k.lds(f'ds_read_b64_tr_b16 a[{base+4*m+2*hf}:{base+4*m+2*hf+1}], v{b+8+2*hh+m} offset:{kk*16*EP + hf*4*EP}')
    seq = [(hh, kk) for kk in range(8) for hh in range(2)]
    for i in range(3): rd(*seq[i])
    for i, (hh, kk) in enumerate(seq):
        k.wait(lg=rid[hh, kk])
        base = FR + (hh*8 + kk)*8
        acc = f'a[{16*hh}:{16*hh+15}]'
        k.e(f'v_mfma_f32_32x32x16_bf16 {acc}, a[{base+4}:{base+7}], a[{base}:{base+3}], {acc if kk else "0"}')
        if i + 3 < len(seq): rd(*seq[i + 3])
    k.wait(vm=ids['flag'])
    k.e('s_mov_b32 s99, 0')
    k.label('K1_spin')
    k.e(f'v_readfirstlane_b32 s98, v{vO[0]+1}\ns_cmp_eq_u32 s98, 1\ns_cbranch_scc1 K1_go')
    k.e(f's_add_u32 s99, s99, 1\ns_cmp_gt_u32 s99, 100000\ns_cbranch_scc1 K1_go')
    k.e(f's_sleep 4\nbuffer_load_dword v{vO[0]+1}, v{vO[0]}, s[{SDBG}:{SDBG+3}], 0 offen sc1\ns_waitcnt vmcnt(0)\ns_branch K1_spin')
    k.label('K1_go')
    k.e('s_sub_u32 s7, s5, 12\ns_lshl_b32 s7, s7, 2\ns_add_u32 s7, s7, s3\ns_lshl_b32 s7, s7, 13\ns_add_u32 s98, s7, 4096\ns_nop 6')
    for hh in range(2):
        for r in range(12):
            k.vmem(f'buffer_atomic_add_f32 a{16*hh+r}, v{b+12}, s[{SKV}:{SKV+3}], {"s7" if hh == 0 else "s98"} offen offset:{(8*(r >> 2) + (r & 3))*128}')
    k.label('K1_done')
    k.e('s_endpgm')
    return k.text(), 256 + 184

def gen_k2(o):
    k = Asm()
    SA, SB, SKV, SXR, SOUT = 28, 32, 36, 40, 44
    D = o.k2_depth
    vA = 2
    vB = 6
    vH = 12
    ACC0 = 200
    XR = 220
    def acc(rho, ct): return f'v[{ACC0+4*ct}:{ACC0+4*ct+3}]' if rho == 0 else f'a[{(rho-1)*20+4*ct}:{(rho-1)*20+4*ct+3}]'
    def buf(slot, i):
        idx = slot*9 + i
        if idx < 49: return f'a[{60+4*idx}:{60+4*idx+3}]'
        idx -= 49
        assert 100 + 4*idx + 3 < ACC0
        return f'v[{100+4*idx}:{100+4*idx+3}]'
    k.label('k2_kernel')
    k.e('s_cmp_ge_u32 s2, 256\ns_cbranch_scc1 K2_done')
    k.e('s_load_dwordx2 s[8:9], s[0:1], 0\ns_load_dwordx2 s[10:11], s[0:1], 56\ns_load_dwordx2 s[12:13], s[0:1], 72')
    k.e(f'v_lshrrev_b32 v1, 6, v0\nv_and_b32 v0, 63, v0')
    k.e('v_readfirstlane_b32 s3, v1')
    k.e('s_and_b32 s4, s2, 7\ns_lshl_b32 s4, s4, 2\ns_lshr_b32 s5, s2, 3\ns_and_b32 s6, s5, 3\ns_add_u32 s4, s4, s6\ns_lshr_b32 s5, s5, 2')
    k.e('v_lshlrev_b32 v1, 4, v0')
    for rho in range(4):
        k.e(f's_add_u32 s6, s3, {rho}\ns_and_b32 s6, s6, 3\ns_mul_i32 s6, s6, {RT}\nv_add_u32 v{vA+rho}, s6, v1')
    for ct in range(5): k.e(f'v_add_u32 v{vB+ct}, {ct*CT}, v1')
    k.e('s_mul_i32 s50, s3, 12288\ns_add_u32 s51, s50, 4096\ns_add_u32 s52, s50, 8192')
    k.e(f's_mul_i32 s53, s3, 5120\ns_add_u32 s53, s53, {48*1024}\ns_add_u32 s54, s53, 4096')
    m, g = vH, vH + 1
    k.e(f'v_and_b32 v{m}, 15, v0\nv_lshrrev_b32 v{g}, 4, v0')
    k.e(f'v_cmp_eq_u32 vcc, 0, v{g}\nv_mov_b32 v{vH+2}, {BIG}')
    kv1 = vH + 4
    k.e(f'v_lshlrev_b32 v{vH+3}, 4, v{g}')
    k.e(f'v_lshlrev_b32 v{kv1}, 7, v{m}\nv_and_b32 v{kv1+1}, 3, v{m}\nv_lshlrev_b32 v{kv1+1}, 7, v{kv1+1}\nv_add_u32 v{kv1+1}, 2048, v{kv1+1}\nv_mov_b32 v{kv1+2}, 2560')
    for i in range(3):
        k.e(f'v_add_u32 v{kv1+3+i}, 64, v{kv1+i}\nv_cndmask_b32 v{kv1+3+i}, v{vH+2}, v{kv1+3+i}, vcc\nv_add_u32 v{kv1+i}, v{kv1+i}, v{vH+3}')
    k.e('s_lshl_b32 s6, s5, 2\ns_add_u32 s6, s6, s3\ns_lshl_b32 s55, s6, 12\ns_mul_i32 s6, s6, 5')
    pq1 = vH + 10
    for i in range(2):
        G, y, z = vH + 12, vH + 13, vH + 14
        if i == 0: k.e(f'v_add_u32 v{G}, s6, v{g}')
        else: k.e(f's_add_u32 s6, s6, 4\nv_mov_b32 v{G}, s6')
        k.e(f'v_lshrrev_b32 v{y}, 2, v{G}\nv_lshlrev_b32 v{y}, 9, v{y}')
        k.e(f'v_and_b32 v{z}, 1, v{G}\nv_lshlrev_b32 v{z}, 8, v{z}\nv_add_u32 v{y}, v{y}, v{z}')
        k.e(f'v_and_b32 v{z}, 2, v{G}\nv_lshlrev_b32 v{z}, 2, v{z}\nv_add_u32 v{y}, v{y}, v{z}')
        k.e(f'v_lshlrev_b32 v{z}, 4, v{m}\nv_add_u32 v{pq1+i}, v{y}, v{z}')
    k.e(f'v_cndmask_b32 v{pq1+1}, v{vH+2}, v{pq1+1}, vcc')
    for rt in range(4): k.e(f's_mov_b32 s{56+rt}, {rt*RT + 48*1024}\ns_mov_b32 s{60+rt}, {rt*RT + 68*1024}')
    vOUT = vH + 2
    k.e(f'v_mul_u32_u24 v{vOUT}, 1280, v{m}\nv_lshlrev_b32 v{vH+3}, 3, v{g}\nv_add_u32 v{vOUT}, v{vOUT}, v{vH+3}')
    k.e('s_waitcnt lgkmcnt(0)')
    add64(k, 's14', 's15', 's12', 's13', KV_OFF); srd(k, SKV, 's14', 's15', KV_SZ)
    k.e(f's_mul_i32 s6, s4, {4*RT}')
    add64(k, 's14', 's15', 's12', 's13', 's6'); srd(k, SA, 's14', 's15', 4*RT)
    HA = 32
    HB = 56
    for i in range(3):
        k.vmem(f'buffer_load_dwordx4 v[{HA+8*i}:{HA+8*i+3}], v{kv1+i}, s[{SKV}:{SKV+3}], s55 offen')
        k.vmem(f'buffer_load_dwordx4 v[{HA+8*i+4}:{HA+8*i+7}], v{kv1+3+i}, s[{SKV}:{SKV+3}], s55 offen')
    for rt in range(4):
        for i in range(2):
            hid = k.vmem(f'buffer_load_dwordx2 v[{HB+4*rt+2*i}:{HB+4*rt+2*i+1}], v{pq1+i}, s[{SA}:{SA+3}], s{60+rt} offen')
    k.e(f's_mul_i32 s6, s5, {5*CT}\ns_add_u32 s6, s6, {B2_OFF}')
    add64(k, 's14', 's15', 's12', 's13', 's6'); srd(k, SB, 's14', 's15', 5*CT)
    lid = {}
    def so(step):
        if step < 12: return f's{50 + (step >> 2)}', (step & 3)*1024
        j = step - 12
        return f's{53 + (j >> 2)}', (j & 3)*1024
    def load_b(step):
        s, imm = so(step)
        for ct in range(5): lid['b', step] = k.vmem(f'buffer_load_dwordx4 {buf(step % D, 4+ct)}, v{vB+ct}, s[{SB}:{SB+3}], {s} offen offset:{imm} {o.k2_ldb}')
    def load_a(step):
        s, imm = so(step)
        fl = o.k2_lda if step < 12 else 'sc1'
        for rho in range(4): lid['a', step] = k.vmem(f'buffer_load_dwordx4 {buf(step % D, rho)}, v{vA+rho}, s[{SA}:{SA+3}], {s} offen offset:{imm} {fl}')
    for st in range(2): load_a(st); load_b(st)
    k.e('s_lshl_b32 s6, s4, 2\ns_add_u32 s6, s6, s3\ns_mul_i32 s6, s6, 20480\ns_mul_i32 s7, s5, 160\ns_add_u32 s6, s6, s7')
    add64(k, 's14', 's15', 's8', 's9', 's6'); srd(k, SXR, 's14', 's15', 15*1280 + 160)
    add64(k, 's14', 's15', 's10', 's11', 's6'); srd(k, SOUT, 's14', 's15', 15*1280 + 160)
    k.wait(vm=hid)
    for i in range(3):
        for j in range(4): k.e(f'v_cvt_pk_bf16_f32 v{HA+8*i+j}, v{HA+8*i+2*j}, v{HA+8*i+2*j+1}')
    k.e('s_nop 1')
    HD = 72
    for rt in range(4):
        for i in range(3):
            d = HD + 12*rt + 4*i
            k.e(f'v_mfma_f32_16x16x32_bf16 v[{d}:{d+3}], v[{HA+8*i}:{HA+8*i+3}], v[{HB+4*rt}:{HB+4*rt+3}], 0')
    k.e('s_nop 7')
    for rt in range(4): k.e(f'v_add_f32 v{HD+12*rt+8}, 0x358637bd, v{HD+12*rt+8}')
    for rt in range(4): k.e(f'v_rcp_f32 v{HD+12*rt+8}, v{HD+12*rt+8}')
    k.e('s_nop 0')
    for rt in range(4):
        d = HD + 12*rt
        for j in range(8): k.e(f'v_mul_f32 v{d+j}, v{d+j}, v{d+8}')
        for j in range(4): k.e(f'v_cvt_pk_bf16_f32 v{d+j}, v{d+2*j}, v{d+2*j+1}')
        for i in range(2):
            sid = k.vmem(f'buffer_store_dwordx2 v[{d+2*i}:{d+2*i+1}], v{pq1+i}, s[{SA}:{SA+3}], s{56+rt} offen sc1')
    assert HD + 48 <= 120
    for st in range(2, min(D, 5)): load_a(st); load_b(st)
    for ct in range(5): xrid = k.vmem(f'buffer_load_dwordx2 v[{XR+2*ct}:{XR+2*ct+1}], v{vOUT}, s[{SXR}:{SXR+3}], 0 offen offset:{ct*32}')
    vF = vH + 4
    k.e(f's_lshl_b32 s6, s4, 12\ns_add_u32 s6, s6, 3072\nv_mov_b32 v{vF}, s6\nv_mov_b32 v{vF+1}, 1')
    k.e(f's_cmp_eq_u32 s3, 0\ns_cselect_b32 s7, s6, {BIG}\nv_mov_b32 v{vF+2}, {BIG}\nv_writelane_b32 v{vF+2}, s7, 0')
    nxt = min(D, 5)
    polled = False
    for step in range(17):
        k.wait(vm=max(lid['a', step], lid['b', step]))
        first = step == 0
        for ct in range(5):
            for rho in range(4):
                k.e(f'v_mfma_f32_16x16x32_bf16 {acc(rho, ct)}, {buf(step % D, 4+ct)}, {buf(step % D, rho)}, {"0" if first else acc(rho, ct)}')
        if step == 1:
            k.wait(vm=sid)
            k.e('s_barrier')
            k.vmem(f'buffer_atomic_add v{vF+1}, v{vF+2}, s[{SKV}:{SKV+3}], 0 offen sc1')
        while nxt < 17 and nxt <= step + D and (step >= 1 or nxt < 5):
            if nxt >= 12 and not polled:
                polled = True
                k.e('s_mov_b32 s99, 0')
                k.label('K2_spin')
                k.e(f'buffer_load_dword v{vF+3}, v{vF}, s[{SKV}:{SKV+3}], 0 offen sc1\ns_waitcnt vmcnt(0)')
                k.e(f'v_readfirstlane_b32 s98, v{vF+3}\ns_cmp_ge_u32 s98, 8\ns_cbranch_scc1 K2_go')
                k.e('s_add_u32 s99, s99, 1\ns_cmp_gt_u32 s99, 100000\ns_cbranch_scc1 K2_go\ns_sleep 2\ns_branch K2_spin')
                k.label('K2_go')
                k.vm_done = k.vm - 1
            load_a(nxt); load_b(nxt); nxt += 1
    vR = vH + 4
    k.e('v_lshlrev_b32 v1, 4, v0')
    for rho in range(1, 4):
        k.e(f's_add_u32 s6, s3, {rho}\ns_and_b32 s6, s6, 3\ns_mul_i32 s6, s6, 15360\ns_add_u32 s6, s6, {(rho-1)*5120}\nv_add_u32 v{vR+rho}, s6, v1')
    k.e(f's_mul_i32 s6, s3, 15360\nv_add_u32 v{vR}, s6, v1')
    for rho in range(1, 4):
        for ct in range(5): k.lds(f'ds_write_b128 v{vR+rho}, {acc(rho, ct)} offset:{ct*1024}')
    k.wait_all(vm=False)
    k.e('s_barrier')
    RB = 32
    rids = []
    for i in range(15): rids.append(k.lds(f'ds_read_b128 v[{RB+4*i}:{RB+4*i+3}], v{vR} offset:{i*1024}'))
    k.wait(vm=xrid)
    k.e('s_mov_b32 s6, 0xffff0000')
    XU = 100
    for j in range(10): k.e(f'v_lshlrev_b32 v{XU+2*j}, 16, v{XR+j}\nv_and_b32 v{XU+2*j+1}, s6, v{XR+j}')
    for j in range(0, 20, 2): k.e(f'v_pk_add_f32 v[{ACC0+j}:{ACC0+j+1}], v[{ACC0+j}:{ACC0+j+1}], v[{XU+j}:{XU+j+1}]')
    for sl in range(3):
        k.wait(lg=rids[5*sl + 4])
        for j in range(0, 20, 2): k.e(f'v_pk_add_f32 v[{ACC0+j}:{ACC0+j+1}], v[{ACC0+j}:{ACC0+j+1}], v[{RB+20*sl+j}:{RB+20*sl+j+1}]')
    for ct in range(5):
        for j in range(2): k.e(f'v_cvt_pk_bf16_f32 v{XU+2*ct+j}, v{ACC0+4*ct+2*j}, v{ACC0+4*ct+2*j+1}')
        k.vmem(f'buffer_store_dwordx2 v[{XU+2*ct}:{XU+2*ct+1}], v{vOUT}, s[{SOUT}:{SOUT+3}], 0 offen offset:{ct*32} {o.st_out}')
    k.label('K2_done')
    k.e('s_endpgm')
    return k.text(), 512

def desc(name, nv):
    return f'''.amdhsa_kernel {name}
  .amdhsa_next_free_vgpr {nv}
  .amdhsa_next_free_sgpr 102
  .amdhsa_accum_offset 256
  .amdhsa_group_segment_fixed_size 0
  .amdhsa_kernarg_size 80
  .amdhsa_user_sgpr_count 2
  .amdhsa_user_sgpr_kernarg_segment_ptr 1
  .amdhsa_system_sgpr_workgroup_id_x 1
.end_amdhsa_kernel
'''

def build(o):
    k1, nv1 = gen_k1(o)
    k2, nv2 = gen_k2(o)
    hdr = open(f'cdna_kernels/{NAME}.s.ref').read().split('; Override launch')[0]
    out = hdr
    out += '; @launch kernel=k1_kernel grid=(256,1,1) block=(256,1,1) lds=163840\n'
    out += '; @launch kernel=k2_kernel grid=(256,1,1) block=(256,1,1) lds=61440\n'
    out += '.amdgcn_target "amdgcn-amd-amdhsa--gfx950"\n.text\n'
    out += '.set CODE_BYTES, code_end - k1_kernel - 64\n'
    out += '.globl k1_kernel\n.p2align 8\n.type k1_kernel,@function\n' + k1
    out += '.globl k2_kernel\n.p2align 8\n.type k2_kernel,@function\n' + k2
    out += 'code_end:\n'
    out += '.section .rodata,"a"\n.p2align 6\n' + desc('k1_kernel', nv1) + '.p2align 6\n' + desc('k2_kernel', nv2)
    return out

if __name__ == '__main__':
    o = Opt()
    path = f'cdna_kernels/{NAME}.s'
    for a in sys.argv[1:]:
        if a.startswith('-o'): path = a[2:]
        else:
            key, val = a.split('=', 1)
            cur = getattr(o, key)
            setattr(o, key, type(cur)(int(val)) if isinstance(cur, (bool, int)) else val)
    open(path, 'w').write(build(o))
    print('wrote', path)
```
